```python
import torch

def _softmax(x, axis=-1):
    return torch.softmax(x, dim=axis)

def _gelu(x):
    return torch.nn.functional.gelu(x, approximate='tanh')

def _silu(x):
    return torch.nn.functional.silu(x)

def _sigmoid(x):
    return torch.sigmoid(x)

def _layernorm(x, axis=-1, eps=1e-05):
    m = x.mean(dim=axis, keepdim=True)
    v = x.var(dim=axis, keepdim=True, unbiased=False)
    return (x - m) / torch.sqrt(v + eps)

def _scatter_add(tgt, idx, src, axis=0):
    return tgt.clone().index_add_(axis, idx, src)

def _segment_sum(src, seg, n):
    out = torch.zeros((n,) + src.shape[1:], dtype=src.dtype)
    return out.index_add_(0, seg, src)

def _pad(x, pw):
    flat = tuple((v for pair in reversed(pw) for v in pair))
    return torch.nn.functional.pad(x, flat)
kernel_name = 'adaLN_cond__gqa_block_cached__glu_gated_glu__prompt'

def setup_inputs():

    _w = lambda a: (lambda t: t.to(torch.bfloat16) if t.is_floating_point() else t)(torch.as_tensor(a))

    def _A_setup():
        B, Sq, D = (1, 2048, 1024)
        Hq, Hkv, Sk, Dh = (32, 4, 2048, 128)
        assert Hq % Hkv == 0, (Hq, Hkv)
        return {'x': _w((lambda *s: torch.randn(*s, dtype=torch.bfloat16) * 0.05)(B, Sq, D)), 'k_cache': _w((lambda *s: torch.randn(*s, dtype=torch.bfloat16) * 3.2)(B, Hkv, Sk, Dh)), 'v_cache': _w((lambda *s: torch.randn(*s, dtype=torch.bfloat16) * 0.4)(B, Hkv, Sk, Dh)), 'wq': _w((lambda *s: torch.randn(*s, dtype=torch.bfloat16) * 3.2)(D, Hq * Dh) * D ** (-0.5)), 'wo': _w((lambda *s: torch.randn(*s, dtype=torch.bfloat16) * 0.4)(Hq * Dh, D) * (Hq * Dh) ** (-0.5))}
    _A_in = _A_setup()

    def _B_setup():
        B, S, D, F = (1, 2048, 1024, 3584)
        return {'x': _w((lambda *s: torch.randn(*s, dtype=torch.bfloat16) * 0.05)(B, S, D)), 'w_gate': _w((lambda *s: torch.randn(*s, dtype=torch.bfloat16) * 0.05)(D, F)), 'w_up': _w((lambda *s: torch.randn(*s, dtype=torch.bfloat16) * 0.05)(D, F)), 'w_down': _w((lambda *s: torch.randn(*s, dtype=torch.bfloat16) * 0.05)(F, D))}
    _B_in = _B_setup()
    return {'A_x': _A_in['x'], 'A_k_cache': _A_in['k_cache'], 'A_v_cache': _A_in['v_cache'], 'A_wq': _A_in['wq'], 'A_wo': _A_in['wo'], 'B_x': _B_in['x'], 'B_w_gate': _B_in['w_gate'], 'B_w_up': _B_in['w_up'], 'B_w_down': _B_in['w_down'], 'c': _w((lambda *s: torch.randn(*s, dtype=torch.bfloat16) * 0.1)(1, 1024) * 8.0), 'w_mod': _w((lambda *s: torch.randn(*s, dtype=torch.bfloat16) * 0.1)(1024, 6 * 1024) * 1024 ** (-0.5) * 8.0)}

def reference(A_x, A_k_cache, A_v_cache, A_wq, A_wo, B_x, B_w_gate, B_w_up, B_w_down, c, w_mod):

    def _A_ref(x, k_cache, v_cache, wq, wo):
        B, Sq, D = x.shape
        Hq, Dh = (32, 128)
        Hkv = k_cache.shape[1]
        rep = Hq // Hkv
        q = (lambda x, *d: x.permute(*d))((x @ wq).reshape(B, Sq, Hq, Dh), 0, 2, 1, 3)
        k = (lambda x, n, axis: torch.repeat_interleave(x, n, dim=axis))(k_cache, rep, axis=1)
        v = (lambda x, n, axis: torch.repeat_interleave(x, n, dim=axis))(v_cache, rep, axis=1)
        scores = torch.einsum('bhqd,bhkd->bhqk', q, k) * Dh ** (-0.5)
        p = _softmax(scores, axis=-1)
        o = torch.einsum('bhqk,bhkd->bhqd', p, v)
        return (lambda x, *d: x.permute(*d))(o, 0, 2, 1, 3).reshape(B, Sq, Hq * Dh) @ wo

    def _B_ref(x, w_gate, w_up, w_down):
        g = torch.einsum('bsd,df->bsf', x, w_gate)
        u = torch.einsum('bsd,df->bsf', x, w_up)
        h = _sigmoid(g) * u
        return torch.einsum('bsf,fd->bsd', h, w_down)
    x = A_x
    mod = (_silu(c) @ w_mod).reshape(c.shape[0], 6, 1, -1)
    sa, ca, ga, sb, cb, gb = (mod[:, 0].clone(), mod[:, 1].clone(), mod[:, 2].clone(), mod[:, 3].clone(), mod[:, 4].clone(), mod[:, 5].clone())
    h = _layernorm(x, axis=-1) * (1 + ca) + sa
    x = x + ga * _A_ref(h, A_k_cache, A_v_cache, A_wq, A_wo)
    h = _layernorm(x, axis=-1) * (1 + cb) + sb
    x = x + gb * _B_ref(h, B_w_gate, B_w_up, B_w_down)
    return x
```

```python
from core import *
A_X, A_K, A_V, A_WQ, A_WO, A_BX, A_WG, A_WU, A_WD, A_C, A_WMOD, A_OUT, A_DBG, A_WS = [8 * i for i in range(14)]
MB_ = 1 << 20
WS_MOD = 0
WS_KF = 0x10000
WS_VF = WS_KF + 2 * MB_
WS_H1 = WS_VF + 2 * MB_
WS_OF = WS_H1 + 4 * MB_
WS_X1 = WS_OF + 16 * MB_
WS_H2 = WS_X1 + 4 * MB_
WS_HM = WS_H2 + 4 * MB_
WS_END = WS_HM + 128 * 112 * 1024
WS_SIZE = 268435456
LOG2E = 1.4426950408889634
def f2u(x):
    import struct
    return struct.unpack('<I', struct.pack('<f', x))[0]
def hexf(x): return hex(f2u(x))

def srd(p, dst, ptr, size):
    p(f's_mov_b32 {dst[0]}, {ptr[0]}')
    p(f's_and_b32 {dst[1]}, {ptr[1]}, 0xffff')
    p(f's_mov_b32 {dst[2]}, {hex(size)}')
    p(f's_mov_b32 {dst[3]}, 0x20000')

def load_ptr(p, dst, off):
    p(f's_load_dwordx2 {dst}, s[0:1], {off}')

def xsum_g(p, x, t, op='v_add_f32'):
    p(f'v_mov_b32 {t}, {x}')
    p('s_nop 1')
    p(f'v_permlane32_swap_b32 {x}, {t}')
    p(f'{op} {x}, {x}, {t}')
    p(f'v_mov_b32 {t}, {x}')
    p('s_nop 1')
    p(f'v_permlane16_swap_b32 {x}, {t}')
    p(f'{op} {x}, {x}, {t}')
```

```python
import re

class Reg:
    __slots__ = ('k', 'i', 'n')
    def __init__(s, k, i, n=1):
        s.k, s.i, s.n = k, i, n
    def __getitem__(s, x):
        if isinstance(x, slice):
            a = x.start or 0
            b = s.n if x.stop is None else x.stop
            assert 0 <= a < b <= s.n, (s, x)
            return Reg(s.k, s.i + a, b - a)
        assert 0 <= x < s.n, (str(s), x)
        return Reg(s.k, s.i + x, 1)
    def __str__(s):
        return f'{s.k}{s.i}' if s.n == 1 else f'{s.k}[{s.i}:{s.i + s.n - 1}]'
    __repr__ = __str__
    def __format__(s, spec):
        return str(s)
    def regs(s):
        return [(s.k, s.i + j) for j in range(s.n)]

class Alloc:
    def __init__(s, k, lo, hi):
        s.k, s.lo, s.hi, s.p = k, lo, hi, lo
        s.names = {}
    def take(s, n=1, align=1, name=None):
        if n >= 4 and align == 1 and s.k == 's': align = 4
        if n >= 2 and align == 1: align = 2
        p = (s.p + align - 1) // align * align
        assert p + n <= s.hi, f'out of {s.k} registers (need {n} at {p}, hi {s.hi})'
        s.p = p + n
        r = Reg(s.k, p, n)
        if name: s.names[name] = r
        return r
    def mark(s): return s.p
    def reset(s, p): s.p = p

_reg_re = re.compile(r'(?<![\w.])([vas])(?:(\d+)|\[(\d+):(\d+)\])(?![\w])')
def parse_regs(opnd):
    out = []
    for m in _reg_re.finditer(opnd):
        k = m.group(1)
        if m.group(2) is not None:
            out.append((k, int(m.group(2))))
        else:
            out += [(k, j) for j in range(int(m.group(3)), int(m.group(4)) + 1)]
    for sp in ('vcc', 'exec', 'm0'):
        if re.search(r'(?<![\w])' + sp + r'(?![\w])', opnd):
            out.append(('x', sp))
    return out

TRANS = ('v_exp_f32', 'v_log_f32', 'v_rcp_f32', 'v_rsq_f32', 'v_sqrt_f32', 'v_sin_f32', 'v_cos_f32', 'v_rcp_iflag_f32')
class Ins:
    __slots__ = ('text', 'op', 'dst', 'src', 'cls', 'tag', 'srcC', 'srcAB', 'passes', 'lds_dma', 'note')
    def __init__(s, text, tag=None):
        s.text = text.strip(); s.tag = tag; s.note = None
        parts = s.text.split(None, 1)
        op = parts[0]; s.op = op
        rest = parts[1] if len(parts) > 1 else ''
        ops = [o.strip() for o in rest.split(',')] if rest else []
        s.dst, s.src, s.srcC, s.srcAB, s.passes = [], [], [], [], 0
        s.lds_dma = False
        base = re.sub(r'_(e32|e64|dpp|sdwa)$', '', op)
        def R(i): return parse_regs(ops[i]) if i < len(ops) else []
        def Rall(lo):
            r = []
            for o in ops[lo:]: r += parse_regs(o)
            return r
        if op.startswith('v_mfma'):
            s.cls = 'mfma'; s.dst = R(0); s.srcAB = R(1) + R(2); s.srcC = R(3); s.src = s.srcAB + s.srcC
            s.passes = 8 if '32x32' in op else 4
        elif op.startswith('buffer_load') or op.startswith('global_load'):
            s.cls = 'vmem'
            if re.search(r'\blds\b', rest) or op.startswith('global_load_lds'):
                s.lds_dma = True; s.src = Rall(0) + [('x', 'm0')]
            else:
                s.dst = R(0); s.src = Rall(1)
        elif op.startswith('buffer_store') or op.startswith('global_store'):
            s.cls = 'vmem'; s.src = Rall(0)
        elif op.startswith('buffer_atomic') or op.startswith('global_atomic'):
            s.cls = 'vmem'; s.src = Rall(0)
            if 'sc0' in rest: s.dst = R(0)
        elif op.startswith('buffer_') :
            s.cls = 'vmem'
        elif op.startswith('ds_read') or op.startswith('ds_bpermute') or op.startswith('ds_swizzle'):
            s.cls = 'ds'; s.dst = R(0); s.src = Rall(1)
        elif op.startswith('ds_'):
            s.cls = 'ds'; s.src = Rall(0)
        elif op.startswith('s_load') or op.startswith('s_memtime') or op.startswith('s_memrealtime'):
            s.cls = 'smem'; s.dst = R(0); s.src = Rall(1)
        elif op in ('s_waitcnt', 's_barrier', 's_nop', 's_endpgm', 's_setprio', 's_sleep', 's_branch') or op.startswith('s_cbranch'):
            s.cls = 'ctl'
            if op.startswith('s_cbranch_scc'): s.src = [('x', 'scc')]
            if op.startswith('s_cbranch_vcc'): s.src = [('x', 'vcc')]
            if op.startswith('s_cbranch_exec'): s.src = [('x', 'exec')]
        elif op.startswith('s_cmp') or op.startswith('s_bitcmp'):
            s.cls = 'salu'; s.src = Rall(0); s.dst = [('x', 'scc')]
        elif op.startswith('s_'):
            s.cls = 'salu'; s.dst = R(0); s.src = Rall(1)
            if 'saveexec' in op: s.dst = s.dst + [('x', 'exec')]; s.src = s.src + [('x', 'exec')]
            if op.startswith('s_cselect') or op.startswith('s_addc') or op.startswith('s_subb'): s.src = s.src + [('x', 'scc')]
            if op.startswith('s_getreg'): s.src = []
        elif op.startswith('v_'):
            s.cls = 'trans' if base in TRANS else 'valu'
            if op.startswith('v_cmp'):
                s.dst = R(0); s.src = Rall(1)
            elif 'permlane' in op and 'swap' in op:
                s.dst = R(0) + R(1); s.src = R(0) + R(1)
            else:
                s.dst = R(0); s.src = Rall(1)
                if base in ('v_fmac_f32', 'v_mac_f32', 'v_dot2c_f32_bf16', 'v_writelane_b32') or 'dpp' in op or 'row_' in rest or 'quad_perm' in rest:
                    s.src = s.src + s.dst
                if op.startswith('v_add_co') or op.startswith('v_addc_co') or op.startswith('v_sub_co') or op.startswith('v_div_scale'):
                    s.dst = R(0) + R(1); s.src = Rall(2)
                if base == 'v_cndmask_b32' and len(ops) == 3: s.src = s.src + [('x', 'vcc')]
        else:
            raise ValueError('unknown op: ' + text)
    def is_valu(s): return s.cls in ('valu', 'trans')
    def states(s):
        if s.op == 's_nop': return int(s.text.split()[1], 0) + 1
        return 1

class Prog:
    def __init__(s, name):
        s.name = name; s.items = []
    def __call__(s, text, tag=None):
        for line in text.strip().split('\n'):
            line = line.split(';')[0].strip()
            if not line: continue
            if line.endswith(':'):
                s.items.append(('label', line[:-1]))
            else:
                s.items.append(('i', Ins(line, tag)))
        return s
    def raw(s, text): s.items.append(('raw', text))
    def label(s, n): s.items.append(('label', n))
    def loop_begin(s, name, count): s.items.append(('lb', name, count)); s.items.append(('label', name))
    def loop_end(s, name): s.items.append(('le', name))
    def wait(s, vm_regs=None, vm_tags=None, lgkm_regs=None, vm0=False, lgkm0=False, lgkm_tags=None):
        s.items.append(('wait', dict(vm_regs=vm_regs or [], vm_tags=vm_tags or [], lgkm_regs=lgkm_regs or [], lgkm_tags=lgkm_tags or [],
                                     vm0=vm0, lgkm0=lgkm0), [None, None]))
    def need(s, tag): s.items.append(('need', tag))
    def fence(s): s.items.append(('fence',))
    def extend(s, other): s.items += other.items

    def trace(s):
        items = s.items
        def match(i):
            d = 0
            for j in range(i, len(items)):
                if items[j][0] == 'lb': d += 1
                if items[j][0] == 'le':
                    d -= 1
                    if d == 0: return j
            raise ValueError('unmatched loop')
        def run(lo, hi, it):
            i = lo
            while i < hi:
                x = items[i]
                if x[0] == 'lb':
                    j = match(i)
                    for k in range(x[2]):
                        yield from run(i + 1, j, k)
                    i = j + 1
                else:
                    yield x, it
                    i += 1
        yield from run(0, len(items), 0)

    @staticmethod
    def dyn(tag, it):
        if tag is None: return None
        return (tag[0], tag[1] * it + tag[2])

    def resolve_waits(s):
        for x in s.items:
            if x[0] == 'wait': x[2][0] = None; x[2][1] = None
        vmq, dsq = [], []
        for x, it in s.trace():
            if x[0] == 'fence': vmq, dsq = [], []
            elif x[0] == 'i':
                I = x[1]
                if I.cls == 'vmem' and not I.op.startswith('buffer_inv') and not I.op.startswith('buffer_wbl2'): vmq.append((set(I.dst), s.dyn(I.tag, it)))
                elif I.cls == 'vmem': vmq.append((set(), None))
                elif I.cls == 'ds': dsq.append((set(I.dst), s.dyn(I.tag, it)))
                elif I.cls == 'smem': dsq.append((set(I.dst), 'smem'))
            elif x[0] == 'wait':
                w = x[1]
                def need_n(q, regs, tags, zero):
                    if zero: return 0
                    rs = set()
                    for r in regs: rs |= set(r.regs())
                    ts = set(s.dyn(t, it) for t in tags)
                    last = -1
                    for idx in range(len(q) - 1, -1, -1):
                        if (q[idx][0] & rs) or (q[idx][1] in ts and q[idx][1] is not None):
                            last = idx; break
                    if last < 0: return None
                    return len(q) - 1 - last
                nv = need_n(vmq, w['vm_regs'], w['vm_tags'], w['vm0']) if (w['vm_regs'] or w['vm_tags'] or w['vm0']) else None
                nl = need_n(dsq, w['lgkm_regs'], w['lgkm_tags'], w['lgkm0']) if (w['lgkm_regs'] or w['lgkm_tags'] or w['lgkm0']) else None
                if nl is not None and any(e[1] == 'smem' for e in dsq): nl = 0
                if nv is not None:
                    nv = min(nv, 63); x[2][0] = nv if x[2][0] is None else min(x[2][0], nv)
                    if len(vmq) > nv: vmq = vmq[len(vmq) - nv:] if nv else []
                if nl is not None:
                    nl = min(nl, 15); x[2][1] = nl if x[2][1] is None else min(x[2][1], nl)
                    if len(dsq) > nl: dsq = dsq[len(dsq) - nl:] if nl else []

    def wait_text(s, x):
        nv, nl = x[2]
        parts = []
        if nv is not None: parts.append(f'vmcnt({nv})')
        if nl is not None: parts.append(f'lgkmcnt({nl})')
        return ('s_waitcnt ' + ' '.join(parts)) if parts else None

    def verify(s):
        errs = []
        vmq, dsq = [], []
        hist = []
        pos = 0
        lastw = {}
        lastC = {}
        laststore = {}
        m0w = -100
        def err(m, I): errs.append(f'{s.name}: {m}: {I.text}')
        n = 0
        for x, it in s.trace():
            if x[0] == 'fence':
                vmq, dsq = [], []; continue
            if x[0] == 'need':
                t = s.dyn(x[1], it)
                for e in vmq:
                    if e[1] == t: errs.append(f'{s.name}: need({t}) not complete'); break
                continue
            if x[0] == 'wait':
                nv, nl = x[2]
                if nv is None and nl is None: continue
                if nv is not None and len(vmq) > nv: vmq = vmq[len(vmq) - nv:] if nv else []
                if nl is not None and len(dsq) > nl: dsq = dsq[len(dsq) - nl:] if nl else []
                pos += 1; continue
            if x[0] != 'i': continue
            I = x[1]; n += 1
            if I.op == 's_waitcnt':
                m = re.search(r'vmcnt\((\d+)\)', I.text)
                if m:
                    k = int(m.group(1)); vmq = vmq[len(vmq) - k:] if (k and len(vmq) > k) else (vmq if k else [])
                m = re.search(r'lgkmcnt\((\d+)\)', I.text)
                if m:
                    k = int(m.group(1)); dsq = dsq[len(dsq) - k:] if (k and len(dsq) > k) else (dsq if k else [])
                pos += 1; continue
            touched = set(I.src) | set(I.dst)
            for q, nm in ((vmq, 'vm'), (dsq, 'lgkm')):
                for e in q:
                    if e[0] & touched:
                        if (e[0] & set(I.src)) or not ((nm == 'vm' and I.cls == 'vmem') or (nm == 'lgkm' and I.cls == 'ds')):
                            err(f'pending {nm} load on {sorted(e[0] & touched)[:3]} (it={it})', I); break
            def dist(p): return pos - p - 1
            for r in set(I.src) | set(I.dst):
                if r not in lastw: continue
                p, c, passes, wI = lastw[r]
                d = dist(p)
                rd = r in I.src; wr = r in I.dst
                if c == 'mfma':
                    if I.cls == 'mfma':
                        if r in I.srcAB: need = {4: 8, 8: 12}[passes]
                        elif r in I.srcC:
                            need = 0 if (I.srcC == wI.dst and I.passes == passes) else {4: 6, 8: 10}[passes]
                        else: need = 0 if set(I.dst) == set(wI.dst) else {4: 6, 8: 10}[passes]
                    else: need = {4: 8, 8: 12}[passes]
                    if d < need: err(f'MFMA->use of {r} dist {d} < {need}', I)
                elif c in ('valu', 'trans'):
                    need = 0
                    if rd:
                        if I.cls == 'mfma' and r[0] in 'va': need = 2
                        if c == 'trans' and I.cls == 'valu': need = max(need, 1)
                        if c == 'trans' and I.cls in ('ds', 'vmem'): need = max(need, 1)
                        if 'permlane' in I.op: need = max(need, 2)
                        if I.op.startswith('v_read'): need = max(need, 1) if r[0] == 'v' else max(need, 4)
                        if 'dpp' in I.op or 'row_' in I.text or 'quad_perm' in I.text: need = max(need, 2)
                        if r[0] == 's' or r == ('x', 'vcc'):
                            if I.cls == 'vmem': need = max(need, 5)
                            elif I.is_valu(): need = max(need, 2)
                            elif I.cls in ('salu', 'ctl'): need = max(need, 1) if r[0] == 's' else need
                        if r == ('x', 'exec') and I.cls == 'mfma': need = max(need, 4)
                    if d < need: err(f'VALU->use of {r} dist {d} < {need}', I)
            if I.is_valu():
                for r in I.dst:
                    if r in lastC:
                        p, passes = lastC[r]
                        need = {4: 3, 8: 7}[passes]
                        if dist(p) < need: err(f'MFMA srcC WAR {r} dist {dist(p)} < {need}', I)
                    if r in laststore and dist(laststore[r]) < 2: err(f'store data WAR {r}', I)
            elif I.dst:
                for r in I.dst:
                    if r in laststore and dist(laststore[r]) < 1: err(f'store data WAR {r}', I)
            if I.lds_dma and dist(m0w) < 1: err('M0 write -> LDS DMA', I)
            if I.cls == 'vmem': vmq.append((set(I.dst), s.dyn(I.tag, it)))
            if I.cls == 'ds': dsq.append((set(I.dst), s.dyn(I.tag, it)))
            if I.cls == 'smem': dsq.append((set(I.dst), 'smem'))
            for r in I.dst:
                if I.cls in ('valu', 'trans', 'mfma'): lastw[r] = (pos, I.cls, I.passes, I)
                else: lastw.pop(r, None)
            if I.cls == 'mfma':
                for r in I.srcC: lastC[r] = (pos, I.passes)
            if I.cls == 'vmem' and ('store' in I.op) and ('x4' in I.op or 'x3' in I.op):
                for r in parse_regs(I.text.split(',')[0]): laststore[r] = pos
            if ('x', 'm0') in I.dst: m0w = pos
            pos += I.states()
        return errs, n

    def text(s):
        out = []
        for x in s.items:
            if x[0] == 'i': out.append(x[1].text)
            elif x[0] == 'label': out.append(x[1] + ':')
            elif x[0] == 'raw': out.append(x[1])
            elif x[0] == 'wait':
                t = s.wait_text(x)
                if t: out.append(t)
        return '\n'.join(out) + '\n'

    def finalize(s):
        s.resolve_waits()
        errs, n = s.verify()
        if errs:
            seen = set()
            for e in errs:
                if e not in seen:
                    seen.add(e); print('ERR', e)
                if len(seen) > 40: break
            raise SystemExit(f'{s.name}: {len(errs)} verification errors')
        return s.text()

def kernel_text(name, body, nvgpr=512, accum=256, nsgpr=102):
    return f'''.text
.globl {name}
.p2align 8
.type {name},@function
{name}:
{body}.section .rodata,"a"
.p2align 6
.amdhsa_kernel {name}
  .amdhsa_next_free_vgpr {nvgpr}
  .amdhsa_next_free_sgpr {nsgpr}
  .amdhsa_accum_offset {accum}
  .amdhsa_group_segment_fixed_size 0
  .amdhsa_kernarg_size 112
  .amdhsa_user_sgpr_count 2
  .amdhsa_user_sgpr_kernarg_segment_ptr 1
  .amdhsa_system_sgpr_workgroup_id_x 1
.end_amdhsa_kernel
'''
```

```python
from common import *

class GemmCfg:
    pass

def gemm_core(p, c, pre_wait_hook=None, tail_hook=None):
    MB, NB, NK, KS, NS, DW, XR, XD, WR, WD = c.MB, c.NB, c.NK, c.KS, c.NS, c.DW, c.XR, c.XD, c.WR, c.WD
    NST = NK // KS
    steps_body = KS * NS
    assert NK % steps_body == 0 and steps_body % XR == 0 and (steps_body * NB) % WR == 0 and steps_body % 4 == 0
    assert DW <= NS - 2 and XD <= XR - 1 and WD <= WR - 1
    NIT = NK // steps_body
    GPS = NB * KS
    xb = lambda s, i: c.xbuf[((s % XR) * MB + i) * 4:((s % XR) * MB + i) * 4 + 4]
    wb = lambda g: c.wbuf[(g % WR) * 4:(g % WR) * 4 + 4]

    def dma(P, stage_rel, i, a):
        slot = stage_rel % NS
        return (f's_add_u32 m0, {c.s_wl}, {c.dma_lds(i, slot)}',
                (f'buffer_load_dwordx4 {c.dma_voff[i]}, {c.rW}, {c.s_wo} offen lds', ('W', a, stage_rel)))
    def xload(step_rel, i):
        return f'buffer_load_dwordx4 {xb(step_rel, i)}, {c.x_voff[i]}, {c.rX}, {c.s_xo} offen offset:{(step_rel & 3) * 1024}'
    def trread(g_rel):
        st, gi = divmod(g_rel, GPS)
        ks, j = divmod(gi, NB)
        out = []
        for hh in range(2):
            v, imm = c.tr(j, ks, hh, st % NS)
            out.append(f'ds_read_b64_tr_b16 {wb(g_rel)[2*hh:2*hh+2]}, {v} offset:{imm}')
        return out

    for t in range(DW):
        for i in range(c.ndma):
            m, (d, tag) = dma(p, t, i, 0)
            p(m); p('s_nop 0'); p(d, tag=tag)
        p(f's_add_u32 {c.s_wo}, {c.s_wo}, {c.w_stride}')
        if t == 0:
            for s in range(min(XD, 2)):
                for i in range(MB): p(xload(s, i))
    for s in range(min(XD, 2), XD):
        for i in range(MB): p(xload(s, i))
        if (s & 3) == 3: p(f's_add_u32 {c.s_xo}, {c.s_xo}, 4096')
    assert XD >= 2
    if pre_wait_hook: pre_wait_hook()
    else:
        for j in range(NB):
            for i in range(MB):
                for r in range(4): p(f'v_mov_b32 {c.acc(j, i)[r]}, 0')
    p.wait(vm_tags=[('W', 0, 0)])
    p('s_barrier')
    for g in range(WD):
        for t in trread(g): p(t)

    def body(last):
        a = 0 if last else NS
        base = (NIT - 1) * NS if last else 0
        ngroups = GPS * NS
        for g in range(ngroups):
            st, gi = divmod(g, GPS)
            ks, j = divmod(gi, NB)
            step = st * KS + ks
            gaps = [dict(s=[], m=[]) for _ in range(MB)]
            gn = g + WD
            exists = not (last and gn >= ngroups)
            pre_barrier = None
            if exists:
                if gn % GPS == 0:
                    pre_barrier = gn // GPS
                rd = trread(gn)
                gaps[0]['m'].append(rd[0]); gaps[min(1, MB - 1)]['m'].append(rd[1])
            sn = step + XD
            if j < MB and not (last and sn >= steps_body):
                gaps[MB - 1]['m'].append(xload(sn, j))
                if j == MB - 1 and (sn & 3) == 3:
                    gaps[MB - 1]['post'] = [f's_add_u32 {c.s_xo}, {c.s_xo}, 4096']
            tn = st + DW
            if not (last and tn >= NS):
                first = MB if KS * NB > MB + c.ndma else 0
                span = GPS - WD - first - 1
                pos = [first + (k * span) // c.ndma for k in range(c.ndma)]
                for k in range(c.ndma):
                    if pos[k] == gi:
                        m, (d, tag) = dma(p, tn, k, a)
                        gidx = MB - 2 if MB >= 4 else MB - 1
                        gaps[max(gidx - 1, 0)]['s'].append(m)
                        gaps[gidx]['m'].append((d, ('W', a, base + tn)))
                        if k == c.ndma - 1: gaps[gidx].setdefault('post', []).append(f's_add_u32 {c.s_wo}, {c.s_wo}, {c.w_stride}')
            for i in range(MB):
                if i == 0:
                    vmr = [c.xbuf[(step % XR) * MB * 4:((step % XR) + 1) * MB * 4]] if j == 0 else []
                A = c.acc(j, i)
                p(f'v_mfma_f32_16x16x32_bf16 {A}, {wb(g)}, {xb(step, i)}, {A}')
                for x in gaps[i]['s']: p(x)
                if i == MB - 1:
                    g1 = g + 1
                    if not (last and g1 >= ngroups):
                        st1, gi1 = divmod(g1, GPS); ks1, j1 = divmod(gi1, NB); step1 = st1 * KS + ks1
                        vmr = [c.xbuf[(step1 % XR) * MB * 4:((step1 % XR) + 1) * MB * 4]] if j1 == 0 else []
                        p.wait(lgkm_regs=[wb(g1)], vm_regs=vmr)
                if i == 0 and pre_barrier is not None:
                    p.wait(vm_tags=[('W', a, base + pre_barrier)])
                    p('s_barrier')
                for x in gaps[i]['m']:
                    if isinstance(x, tuple): p(x[0], tag=x[1])
                    else: p(x)
                for x in gaps[i].get('post', []): p(x)
    p.wait(lgkm_regs=[wb(0)], vm_regs=[c.xbuf[0:MB * 4]])
    if NIT > 1:
        p(f's_mov_b32 {c.s_cnt}, {NIT - 1}')
        p.loop_begin(f'L_{c.name}_loop', NIT - 1)
        body(False)
        p(f's_sub_u32 {c.s_cnt}, {c.s_cnt}, 1\ns_cmp_lg_u32 {c.s_cnt}, 0\ns_cbranch_scc1 L_{c.name}_loop')
        p.loop_end(f'L_{c.name}_loop')
    body(True)
```

```python
from common import *
from gemm_core import *
from k_gemm import wave_setup

MARGIN = 90.0
def k_attn(**opt):
    p = Prog('attn')
    S = Alloc('s', 4, 100); V = Alloc('v', 1, 256); A = Alloc('a', 0, 256)
    pw, pws = S.take(2), S.take(2)
    rW, rws = S.take(4), S.take(4)
    p('s_cmp_ge_u32 s2, 256\ns_cbranch_scc1 L_at_end')
    load_ptr(p, pw, A_WQ); load_ptr(p, pws, A_WS)
    l, l16, wv = wave_setup(p, S, V)
    h, kvh, qb, t0, t1, mb0 = [S.take() for _ in range(6)]
    p(f's_and_b32 {t0}, s2, 7\ns_lshr_b32 {t1}, s2, 3')
    p(f's_lshr_b32 {kvh}, {t0}, 1\ns_lshl_b32 {h}, {kvh}, 3\ns_and_b32 {qb}, {t1}, 7\ns_add_u32 {h}, {h}, {qb}')
    p(f's_and_b32 {qb}, {t0}, 1\ns_lshl_b32 {qb}, {qb}, 2\ns_lshr_b32 {t1}, {t1}, 3\ns_add_u32 {qb}, {qb}, {t1}')
    p(f's_lshl_b32 {mb0}, {qb}, 4\ns_lshl_b32 {t0}, {wv}, 2\ns_add_u32 {mb0}, {mb0}, {t0}')
    c = GemmCfg(); c.name = 'qp'
    c.MB, c.NB, c.NK, c.KS, c.NS, c.DW, c.XR, c.XD, c.WR, c.WD = 4, 8, 32, 2, 4, 2, 8, 6, 4, 3
    c.s_wl, c.s_wo, c.s_xo, c.s_cnt = [S.take() for _ in range(4)]
    tmp = V.take(); tmp2 = V.take()
    Qf = V.take(64, 4)
    vmark = V.mark()
    accr = V.take(128, 4)
    c.x_voff = [V.take() for _ in range(4)]
    c.dma_voff = [V.take() for _ in range(4)]; c.ndma = 4
    trb = [V.take() for _ in range(8)]
    c.acc = lambda j, i: accr[(j * 4 + i) * 4:(j * 4 + i) * 4 + 4]
    c.xbuf = A.take(128, 4); c.wbuf = A.take(16, 4)
    for i in range(4): p(f'v_add_u32 {c.x_voff[i]}, {i * 32768}, {l16}')
    p(f's_lshl_b32 {t0}, {wv}, 17')
    for i in range(4):
        p(f'v_lshrrev_b32 {tmp}, 4, {l}\nv_add_u32 {tmp}, {4 * i}, {tmp}')
        p(f'v_and_b32 {tmp2}, 7, {tmp}\nv_lshlrev_b32 {tmp2}, 1, {tmp2}')
        p(f'v_and_b32 {c.dma_voff[i]}, 15, {l}\nv_xor_b32 {tmp2}, {tmp2}, {c.dma_voff[i]}')
        p(f'v_lshlrev_b32 {tmp}, 13, {tmp}\nv_lshl_add_u32 {tmp}, {tmp2}, 4, {tmp}\nv_add_u32 {c.dma_voff[i]}, {t0}, {tmp}')
    for j in range(8):
        p(f'v_bfe_u32 {tmp}, {l}, 1, 1\nv_add_u32 {tmp}, {2 * j}, {tmp}')
        p(f'v_bfe_u32 {tmp2}, {l}, 2, 3\nv_lshlrev_b32 {tmp2}, 1, {tmp2}\nv_xor_b32 {tmp}, {tmp}, {tmp2}')
        p(f'v_lshrrev_b32 {tmp2}, 2, {l}\nv_lshlrev_b32 {tmp2}, 8, {tmp2}\nv_lshl_add_u32 {tmp}, {tmp}, 4, {tmp2}')
        p(f'v_and_b32 {tmp2}, 1, {l}\nv_lshl_add_u32 {tmp}, {tmp2}, 3, {tmp}\nv_add_u32 {trb[j]}, 98304, {tmp}')
    c.tr = lambda j, ks, hh, slot: (trb[j], slot * 16384 + (32 * ks + 16 * hh) * 256)
    c.dma_lds = lambda i, slot: slot * 16384 + i * 1024
    c.w_stride = 64 * 8192
    p.wait(lgkm0=True)
    srd(p, rW, pw, 1024 * 8192); srd(p, rws, pws, WS_SIZE)
    c.rW, c.rX = rW, rws
    p(f's_lshl_b32 {c.s_wl}, {wv}, 12\ns_add_u32 {c.s_wl}, {c.s_wl}, 98304\ns_lshl_b32 {c.s_wo}, {h}, 8')
    p(f's_lshl_b32 {c.s_xo}, {mb0}, 15\ns_add_u32 {c.s_xo}, {c.s_xo}, {WS_H1}')
    gemm_core(p, c)
    p('s_nop 7')
    Q = lambda i, s: Qf[(i * 4 + s) * 4:(i * 4 + s) * 4 + 4]
    for i in range(4):
        for s in range(4):
            for hh in range(2):
                a = c.acc(2 * s + hh, i)
                p(f'v_cvt_pk_bf16_f32 {Q(i, s)[2*hh]}, {a[0]}, {a[1]}\nv_cvt_pk_bf16_f32 {Q(i, s)[2*hh+1]}, {a[2]}, {a[3]}')
    V.reset(vmark)
    Sb = [V.take(32, 4), V.take(32, 4)]
    Pb = [V.take(16, 4), V.take(16, 4)]
    Ci = V.take(16, 4)
    ls = V.take(4, 4); mx = V.take(4, 4); va = V.take(); tv = V.take(8, 4)
    Sr = lambda b, bp, i: Sb[b][(bp * 4 + i) * 4:(bp * 4 + i) * 4 + 4]
    Pr = lambda b, i: Pb[b][i * 4:i * 4 + 4]
    Oa = Reg('a', 0, 128); Fr = Reg('a', 128, 16)
    O = lambda j, i: Oa[(j * 4 + i) * 4:(j * 4 + i) * 4 + 4]
    F = lambda k: Fr[(k % 4) * 4:(k % 4) * 4 + 4]
    s_kv, s_kv2, s_m0, s_slot, s_fb, s_it, s_src0 = [S.take() for _ in range(7)]
    FD = 3
    p(f's_lshl_b32 {s_src0}, {kvh}, 19\ns_and_b32 {t0}, {wv}, 1\ns_lshl_b32 {t0}, {t0}, 13\ns_add_u32 {s_src0}, {s_src0}, {t0}')
    p(f's_cmp_lt_u32 {wv}, 2\ns_cselect_b32 {t0}, 0, {WS_VF - 16384 - WS_KF}\ns_add_u32 {s_src0}, {s_src0}, {t0}\ns_add_u32 {s_src0}, {s_src0}, {WS_KF}')
    p(f's_mov_b32 {s_fb}, 0')
    p.label('L_at_restart')
    def stage_dma_setup(slot_sreg_or_const):
        pass
    def dma_ops(i, a, b):
        pre = []
        if i == 0: pre = [f's_mov_b32 m0, {s_m0}']
        if i == 4: pre = [f's_add_u32 m0, {s_m0}, 4096', f's_add_u32 {s_kv2}, {s_kv}, 4096']
        so = s_kv if i < 4 else s_kv2
        post = []
        if i == 7: post = [f's_add_u32 {s_kv}, {s_kv}, 16384', f's_add_u32 {s_m0}, {s_m0}, 32768', f's_and_b32 {s_m0}, {s_m0}, 0x1ffff']
        return pre, (f'buffer_load_dwordx4 {l16}, {rws}, {so} offen offset:{(i & 3) * 1024} lds', ('KV', a, b)), post
    p(f's_mov_b32 {s_kv}, {s_src0}\ns_lshl_b32 {s_m0}, {wv}, 13')
    for st in range(2):
        for i in range(8):
            pre, (d, tag), post = dma_ops(i, 0, st)
            for x in pre: p(x)
            if pre: p('s_nop 0')
            p(d, tag=tag)
            for x in post: p(x)
    for r in range(128): p(f'v_accvgpr_write_b32 {Oa[r]}, 0')
    for i in range(4): p(f'v_mov_b32 {ls[i]}, 0')
    p(f'v_mov_b32 {va}, {l16}\ns_mov_b32 {s_slot}, 0')
    p.wait(vm_tags=[('KV', 0, 0)])
    p('s_barrier')

    def frag_read(k, par):
        if k % 2 == 0:
            bp, s = k >> 3, (k >> 1) & 3
            off = ((2 * par + bp) * 4 + s) * 1024
        else:
            off = 16384 + (par * 8 + (k >> 1)) * 1024
        return f'ds_read_b128 {F(k)}, {va} offset:{off}'
    def present(k, qk, pv): return qk if k % 2 == 0 else pv

    def period(par, qk, sm, pv, prev_sm, nxt, czero=False, dma=None, barrier=None, tagab=(0, 0)):
        Sin = Sb[1 - par]; Pout = 1 - par
        def el(buf, k):
            bp, i, r0 = k >> 3, (k >> 1) & 3, 2 * (k & 1)
            q = Sr(buf, bp, i)
            return q[r0], q[r0 + 1], i, Pr(buf, i)[2 * bp + (k & 1)]
        for k in range(16):
            here = present(k, qk, pv)
            gaps = [[], [], [], []]; sc = [[], [], [], []]
            kn = k + FD
            pre_bar = False
            if kn < 16:
                if present(kn, qk, pv): gaps[0].append(frag_read(kn, par))
            elif nxt is not None:
                if kn == 16 and barrier is not None: pre_bar = True
                if present(kn - 16, *nxt): gaps[0].append(frag_read(kn - 16, 1 - par))
            do_prev = (sm if k > 0 else prev_sm)
            if do_prev:
                e0, e1, i, pd = el(1 - par, k - 1) if k > 0 else el(par, 15)
                gaps[0].append(f'v_add_f32 {ls[i]}, {ls[i]}, {e0}')
                gaps[2].append(f'v_add_f32 {ls[i]}, {ls[i]}, {e1}')
                gaps[2].append(f'v_cvt_pk_bf16_f32 {pd}, {e0}, {e1}')
            if sm:
                e0, e1, i, pd = el(1 - par, k)
                gaps[1].append(f'v_exp_f32 {e0}, {e0}'); gaps[3].append(f'v_exp_f32 {e1}, {e1}')
            post = []
            if dma and k in dma:
                pre, d, post = dma_ops(dma[k], tagab[0], tagab[1])
                sc[0] += pre
                gaps[1].insert(0, d)
            for i in range(4):
                if here:
                    if k % 2 == 0:
                        bp, s = k >> 3, (k >> 1) & 3
                        D = Sr(par, bp, i)
                        C = ('0' if czero else Ci[4*i:4*i+4]) if s == 0 else D
                        p(f'v_mfma_f32_16x16x32_bf16 {D}, {F(k)}, {Q(i, s)}, {C}')
                    else:
                        D = O(k >> 1, i)
                        p(f'v_mfma_f32_16x16x32_bf16 {D}, {F(k)}, {Pr(par, i)}, {D}')
                elif gaps[i] and not here:
                    p('s_nop 0')
                for x in sc[i]: p(x)
                if i == 3:
                    k1 = k + 1
                    if k1 < 16:
                        if present(k1, qk, pv): p.wait(lgkm_regs=[F(k1)])
                    elif nxt is not None and present(0, *nxt): p.wait(lgkm_regs=[F(k1)])
                if i == 0 and pre_bar:
                    p.wait(vm_tags=[barrier])
                    p('s_barrier')
                    p(f's_add_u32 {s_slot}, {s_slot}, 32768\ns_and_b32 {s_slot}, {s_slot}, 0x1ffff')
                    p(f'v_add_u32 {va}, {s_slot}, {l16}')
                for x in gaps[i]:
                    if isinstance(x, tuple): p(x[0], tag=x[1])
                    else: p(x)
                if i == 1:
                    for x in post: p(x)
    for k in range(FD):
        if present(k, True, False): p(frag_read(k, 0))
    p.wait(lgkm_regs=[F(0)])
    period(0, True, False, False, False, (True, False), czero=True)
    p('s_nop 7')
    p(f's_cmp_lg_u32 {s_fb}, 0\ns_cbranch_scc1 L_at_havemax')
    for i in range(4):
        a, b = Sr(0, 0, i), Sr(0, 1, i)
        p(f'v_max3_f32 {mx[i]}, {a[0]}, {a[1]}, {a[2]}\nv_max3_f32 {mx[i]}, {mx[i]}, {a[3]}, {b[0]}\nv_max3_f32 {mx[i]}, {mx[i]}, {b[1]}, {b[2]}\nv_max_f32 {mx[i]}, {mx[i]}, {b[3]}')
    for i in range(4): xsum_g(p, mx[i], tv[0], 'v_max_f32')
    for i in range(4):
        p(f'v_add_f32 {mx[i]}, {hexf(MARGIN)}, {mx[i]}')
        for r in range(4): p(f'v_sub_f32 {Ci[4*i+r]}, 0, {mx[i]}')
    p.label('L_at_havemax')
    for bp in range(2):
        for i in range(4):
            for r in range(4): p(f'v_add_f32 {Sr(0, bp, i)[r]}, {Sr(0, bp, i)[r]}, {Ci[4*i+r]}')
    dB = {0: 0, 2: 1, 4: 2, 6: 3, 8: 4, 9: 5, 10: 6, 11: 7}
    period(1, True, True, False, False, (True, True), dma=dB, barrier=('KV', 0, 1), tagab=(0, 2))
    p(f's_mov_b32 {s_it}, 31')
    p.loop_begin('L_at_loop', 31)
    period(0, True, True, True, True, (True, True), dma={0: 0, 4: 1, 8: 2, 12: 3}, tagab=(1, 3))
    period(1, True, True, True, True, (True, True), dma={0: 4, 3: 5, 6: 6, 9: 7}, barrier=('KV', 1, 2), tagab=(1, 3))
    p(f's_sub_u32 {s_it}, {s_it}, 1\ns_cmp_lg_u32 {s_it}, 0\ns_cbranch_scc1 L_at_loop')
    p.loop_end('L_at_loop')
    period(0, False, True, True, True, (False, True))
    period(1, False, False, True, True, None)
    p('s_waitcnt vmcnt(0)')
    p('s_nop 7')
    for i in range(4): xsum_g(p, ls[i], tv[0])
    p(f's_cmp_lg_u32 {s_fb}, 0\ns_cbranch_scc1 L_at_ok')
    p(f'v_mov_b32 {tv[1]}, {hexf(2048.0)}')
    p(f'v_cmp_nle_f32 s[90:91], {ls[0]}, {tv[1]}')
    for i in range(1, 4):
        p(f'v_cmp_nle_f32 vcc, {ls[i]}, {tv[1]}')
        p('s_nop 1')
        p('s_or_b64 s[90:91], s[90:91], vcc')
    p('s_cmp_lg_u64 s[90:91], 0')
    p(f's_cselect_b32 {t0}, 1, 0')
    p(f'v_mov_b32 {tv[2]}, {t0}\ns_lshl_b32 {t1}, {wv}, 2\ns_add_u32 {t1}, {t1}, {163840 - 16}\nv_mov_b32 {tv[3]}, {t1}')
    p(f'ds_write_b32 {tv[3]}, {tv[2]}')
    p.wait(lgkm0=True)
    p('s_barrier')
    p(f'v_mov_b32 {tv[3]}, {163840 - 16}')
    p(f'ds_read_b128 {tv[4:8]}, {tv[3]}')
    p.wait(lgkm0=True)
    p(f'v_or_b32 {tv[4]}, {tv[4]}, {tv[5]}\nv_or_b32 {tv[6]}, {tv[6]}, {tv[7]}\nv_or_b32 {tv[4]}, {tv[4]}, {tv[6]}')
    p('s_nop 0')
    p(f'v_readfirstlane_b32 {t0}, {tv[4]}')
    p('s_nop 3')
    p(f's_cmp_lg_u32 {t0}, 0\ns_cbranch_scc1 L_at_fallback')
    p.label('L_at_ok')
    for i in range(4): p(f'v_rcp_f32 {ls[i]}, {ls[i]}')
    so = S.take()
    p(f's_lshl_b32 {so}, {mb0}, 17\ns_lshl_b32 {t0}, {h}, 12\ns_add_u32 {so}, {so}, {t0}\ns_add_u32 {so}, {so}, {WS_OF}')
    buf = [Sb[0][0:8], Sb[0][8:16], Sb[0][16:24], Sb[0][24:32]]
    pk = [Sb[1][0:4], Sb[1][4:8], Sb[1][8:12], Sb[1][12:16]]
    n = 0
    for i in range(4):
        for jj in range(4):
            b = buf[n % 4]; d = pk[n % 4]; n += 1
            for hh in range(2):
                for r in range(4): p(f'v_accvgpr_read_b32 {b[4*hh+r]}, {O(2*jj+hh, i)[r]}')
            for e in range(8): p(f'v_mul_f32 {b[e]}, {b[e]}, {ls[i]}')
            for e in range(4): p(f'v_cvt_pk_bf16_f32 {d[e]}, {b[2*e]}, {b[2*e+1]}')
            p(f'buffer_store_dwordx4 {d}, {l16}, {rws}, {so} offen offset:{jj * 1024}')
        if i < 3: p(f's_add_u32 {so}, {so}, {128 * 1024}')
    p('s_waitcnt vmcnt(0)')
    p('s_endpgm')
    p.fence()
    p.label('L_at_fallback')
    p('s_barrier')
    for i in range(4): p(f'v_mov_b32 {mx[i]}, 0xff800000')
    p(f's_lshl_b32 {s_kv}, {kvh}, 19\ns_lshl_b32 {t0}, {wv}, 12\ns_add_u32 {s_kv}, {s_kv}, {t0}\ns_add_u32 {s_kv}, {s_kv}, {WS_KF}')
    p(f's_mov_b32 m0, {t0}\ns_mov_b32 {s_it}, 32')
    p.label('L_at_fbloop')
    for i in range(4): p(f'buffer_load_dwordx4 {l16}, {rws}, {s_kv} offen offset:{i * 1024} lds')
    p('s_waitcnt vmcnt(0)\ns_barrier')
    for bq in range(4):
        for s in range(4): p(f'ds_read_b128 {F(s)}, {l16} offset:{(bq * 4 + s) * 1024}')
        p('s_waitcnt lgkmcnt(0)')
        for s in range(4):
            for i in range(4):
                D = Sr(0, 0, i)
                p(f'v_mfma_f32_16x16x32_bf16 {D}, {F(s)}, {Q(i, s)}, {"0" if s == 0 else D}')
        p('s_nop 7')
        for i in range(4):
            D = Sr(0, 0, i)
            p(f'v_max3_f32 {mx[i]}, {mx[i]}, {D[0]}, {D[1]}\nv_max3_f32 {mx[i]}, {mx[i]}, {D[2]}, {D[3]}')
    p('s_barrier')
    p(f's_add_u32 {s_kv}, {s_kv}, 16384\ns_sub_u32 {s_it}, {s_it}, 1\ns_cmp_lg_u32 {s_it}, 0\ns_cbranch_scc1 L_at_fbloop')
    for i in range(4): xsum_g(p, mx[i], tv[0], 'v_max_f32')
    for i in range(4):
        for r in range(4): p(f'v_sub_f32 {Ci[4*i+r]}, 0, {mx[i]}')
    p(f's_mov_b32 {s_fb}, 1\ns_branch L_at_restart')
    p.label('L_at_end')
    p('s_endpgm')
    return kernel_text('k_attn_kernel', p.finalize())

if __name__ == '__main__':
    t = k_attn(); print(len(t), t.count('\n'))
```

```python
from common import *
from gemm_core import *

LDS_GU = 4 * 28672
LDS_OPROJ = 8 * 16384
LDS_DOWN = 7 * 16384

def wave_setup(p, S, V):
    l = V.take(name='l'); l16 = V.take(name='l16'); wv = S.take(name='wv')
    p(f'v_lshrrev_b32 {l16}, 6, v0\nv_and_b32 {l}, 63, v0')
    p(f'v_readfirstlane_b32 {wv}, {l16}')
    p(f'v_lshlrev_b32 {l16}, 4, {l}')
    return l, l16, wv

def k_gateup(**opt):
    p = Prog('gateup')
    S = Alloc('s', 4, 100); V = Alloc('v', 1, 256); A = Alloc('a', 0, 256)
    pg, pu, pws = S.take(2), S.take(2), S.take(2)
    rW, rws = S.take(4), S.take(4)
    p('s_cmp_ge_u32 s2, 256\ns_cbranch_scc1 L_gu_end')
    load_ptr(p, pg, A_WG); load_ptr(p, pu, A_WU); load_ptr(p, pws, A_WS)
    l, l16, wv = wave_setup(p, S, V)
    c = GemmCfg(); c.name = 'gu'
    c.MB, c.NB, c.NK, c.KS, c.NS, c.DW, c.XR, c.XD, c.WR, c.WD = 4, 14, 32, 2, 4, 2, 4, 3, 4, 3
    mt, nt, par, t0, t1 = [S.take() for _ in range(5)]
    c.s_wl, c.s_wo, c.s_xo, c.s_cnt = [S.take() for _ in range(4)]
    p(f's_and_b32 {t0}, s2, 7\ns_lshr_b32 {t1}, s2, 3')
    p(f's_lshr_b32 {mt}, {t0}, 2\ns_lshl_b32 {mt}, {mt}, 2\ns_lshr_b32 {nt}, {t1}, 3\ns_add_u32 {mt}, {mt}, {nt}')
    p(f's_and_b32 {nt}, {t0}, 3\ns_lshl_b32 {nt}, {nt}, 3\ns_and_b32 {t1}, {t1}, 7\ns_add_u32 {nt}, {nt}, {t1}')
    p(f's_and_b32 {par}, {nt}, 1')
    tmp = V.take(); tmp2 = V.take()
    c.x_voff = [V.take() for _ in range(4)]
    c.dma_voff = [V.take() for _ in range(7)]; c.ndma = 7
    trb = [V.take() for _ in range(4)]
    accr = V.take(224, 4)
    c.acc = lambda j, i: accr[(j * 4 + i) * 4:(j * 4 + i) * 4 + 4]
    c.xbuf = A.take(64, 4); c.wbuf = A.take(16, 4)
    for i in range(4): p(f'v_add_u32 {c.x_voff[i]}, {i * 32768}, {l16}')
    p(f's_and_b32 {t0}, {wv}, 1\ns_mul_i32 {t0}, {t0}, 448')
    p(f's_mov_b32 {t1}, 4682')
    for i in range(7):
        v = c.dma_voff[i]
        p(f'v_add_u32 {tmp}, {t0}, {l}')
        if i: p(f'v_add_u32 {tmp}, {64 * i}, {tmp}')
        p(f'v_mul_lo_u32 {tmp2}, {tmp}, {t1}\nv_lshrrev_b32 {tmp2}, 16, {tmp2}')
        p(f'v_mul_u32_u24 {v}, 14, {tmp2}\nv_sub_u32 {tmp}, {tmp}, {v}')
        p(f'v_mul_u32_u24 {v}, 7168, {tmp2}\nv_lshl_add_u32 {v}, {tmp}, 4, {v}')
    p(f'v_lshrrev_b32 {tmp}, 2, {l}\nv_mul_u32_u24 {tmp}, 224, {tmp}\nv_and_b32 {tmp2}, 3, {l}\nv_lshl_add_u32 {tmp}, {tmp2}, 3, {tmp}')
    p(f's_lshl_b32 {t0}, {par}, 5')
    p(f'v_add_u32 {trb[0]}, {t0}, {tmp}')
    p(f's_cmp_eq_u32 {par}, 0\ns_cselect_b32 {t0}, 192, 0')
    p(f'v_add_u32 {trb[1]}, {t0}, {tmp}')
    p(f'v_add_u32 {trb[2]}, 57344, {trb[0]}\nv_add_u32 {trb[3]}, 57344, {trb[1]}')
    def tr(j, ks, hh, slot):
        a, M = j >> 1, j & 1
        imm = (slot & 1) * 28672 + M * 14336 + (32 * ks + 16 * hh) * 224 + (a * 32 if a < 6 else 0)
        return trb[(slot >> 1) * 2 + (1 if a == 6 else 0)], imm
    c.tr = tr
    c.dma_lds = lambda i, slot: slot * 28672 + i * 1024
    c.w_stride = 64 * 7168
    p.wait(lgkm0=True)
    p(f's_cmp_lt_u32 {wv}, 2\ns_cselect_b32 {t0}, {pg[0]}, {pu[0]}\ns_cselect_b32 {t1}, {pg[1]}, {pu[1]}')
    p(f's_mov_b32 {rW[0]}, {t0}\ns_and_b32 {rW[1]}, {t1}, 0xffff\ns_mov_b32 {rW[2]}, {1024 * 7168}\ns_mov_b32 {rW[3]}, 0x20000')
    srd(p, rws, pws, WS_SIZE)
    c.rW, c.rX = rW, rws
    p(f's_lshr_b32 {t0}, {wv}, 1\ns_mul_i32 {c.s_wl}, {t0}, 14336\ns_and_b32 {t0}, {wv}, 1\ns_mul_i32 {t0}, {t0}, 7168\ns_add_u32 {c.s_wl}, {c.s_wl}, {t0}')
    p(f's_mul_i32 {c.s_wo}, {nt}, 224')
    mb0 = S.take()
    p(f's_lshl_b32 {mb0}, {mt}, 4\ns_lshl_b32 {t0}, {wv}, 2\ns_add_u32 {mb0}, {mb0}, {t0}')
    p(f's_lshl_b32 {c.s_xo}, {mb0}, 15\ns_add_u32 {c.s_xo}, {c.s_xo}, {WS_H2}')
    gemm_core(p, c)
    p('s_nop 7')
    so, so1 = S.take(), S.take()
    p(f's_mul_i32 {t0}, {nt}, 7\ns_add_u32 {t1}, {t0}, {par}\ns_lshr_b32 {t1}, {t1}, 1\ns_lshl_b32 {t1}, {t1}, 10')
    p(f's_mul_i32 {so}, {mb0}, {112 * 1024}\ns_add_u32 {so}, {so}, {WS_HM}')
    p(f's_cmp_eq_u32 {par}, 0\ns_cselect_b32 {so1}, 6, 0\ns_add_u32 {so1}, {so1}, {t0}\ns_lshr_b32 {so1}, {so1}, 1\ns_lshl_b32 {so1}, {so1}, 10')
    p(f's_lshl_b32 {t0}, {par}, 3\ns_add_u32 {so1}, {so1}, {t0}\ns_add_u32 {so1}, {so1}, {so}\ns_add_u32 {so}, {so}, {t1}')
    def act(a, i):
        g, u = c.acc(2 * a, i), c.acc(2 * a + 1, i)
        return g, u
    for i in range(4):
        for q in range(4):
            pos = [2 * q, 2 * q + 1] if q < 3 else [6]
            el = [(act(a, i)[0][r], act(a, i)[1][r]) for a in pos for r in range(4)]
            for g, u in el: p(f'v_exp_f32 {g}, -{g}')
            for g, u in el: p(f'v_add_f32 {g}, 1.0, {g}')
            for g, u in el: p(f'v_rcp_f32 {g}, {g}')
            for g, u in el: p(f'v_mul_f32 {g}, {g}, {u}')
            d = act(pos[0], i)[1]
            for k in range(len(el) // 2): p(f'v_cvt_pk_bf16_f32 {d[k]}, {el[2*k][0]}, {el[2*k+1][0]}')
            if q < 3: p(f'buffer_store_dwordx4 {d}, {l16}, {rws}, {so} offen offset:{q * 1024}')
            else: p(f'buffer_store_dwordx2 {d[0:2]}, {l16}, {rws}, {so1} offen')
        if i < 3: p(f's_add_u32 {so}, {so}, {112 * 1024}\ns_add_u32 {so1}, {so1}, {112 * 1024}')
    p('s_waitcnt vmcnt(0)')
    p.label('L_gu_end')
    p('s_endpgm')
    return kernel_text('k_gateup_kernel', p.finalize())

def k_skinny(name, kname, a_w, wrows, x_off, nkx, NS, XR, final):
    p = Prog(name)
    S = Alloc('s', 4, 100); V = Alloc('v', 1, 256); A = Alloc('a', 0, 256)
    pw, pws, px = S.take(2), S.take(2), S.take(2)
    rW, rws, rx = S.take(4), S.take(4), S.take(4)
    p(f's_cmp_ge_u32 s2, 256\ns_cbranch_scc1 L_{name}_end')
    load_ptr(p, pw, a_w); load_ptr(p, pws, A_WS); load_ptr(p, px, A_OUT if final else A_X)
    l, l16, wv = wave_setup(p, S, V)
    c = GemmCfg(); c.name = name
    c.MB, c.NB, c.NK, c.KS, c.NS, c.DW, c.XR, c.XD, c.WR, c.WD = 2, 4, nkx, 4, NS, NS - 2, XR, XR - 2, 8, 6
    mt, nt, t0, t1, mb0 = [S.take() for _ in range(5)]
    c.s_wl, c.s_wo, c.s_xo, c.s_cnt = [S.take() for _ in range(4)]
    p(f's_and_b32 {t0}, s2, 7\ns_lshr_b32 {t1}, s2, 3')
    p(f's_lshr_b32 {mt}, {t0}, 1\ns_lshl_b32 {mt}, {mt}, 2\ns_lshr_b32 {nt}, {t1}, 3\ns_add_u32 {mt}, {mt}, {nt}')
    p(f's_and_b32 {nt}, {t0}, 1\ns_lshl_b32 {nt}, {nt}, 3\ns_and_b32 {t1}, {t1}, 7\ns_add_u32 {nt}, {nt}, {t1}')
    tmp = V.take(); tmp2 = V.take(); tmp3 = V.take()
    c.x_voff = [V.take() for _ in range(2)]
    c.dma_voff = [V.take() for _ in range(4)]; c.ndma = 4
    trb = [V.take() for _ in range(8)]
    accr = V.take(32, 4)
    c.acc = lambda j, i: accr[(j * 2 + i) * 4:(j * 2 + i) * 4 + 4]
    c.xbuf = A.take(XR * 8, 4); c.wbuf = A.take(32, 4)
    for i in range(2): p(f'v_add_u32 {c.x_voff[i]}, {i * nkx * 1024}, {l16}')
    p(f'v_lshrrev_b32 {tmp}, 4, {l}\nv_lshlrev_b32 {tmp}, 1, {tmp}\nv_and_b32 {tmp2}, 7, {l}\nv_xor_b32 {tmp}, {tmp}, {tmp2}\nv_and_b32 {tmp}, 7, {tmp}')
    p(f'v_lshrrev_b32 {tmp2}, 3, {l}\nv_lshlrev_b32 {tmp2}, 11, {tmp2}\nv_lshl_add_u32 {tmp}, {tmp}, 4, {tmp2}')
    p(f's_lshl_b32 {t0}, {wv}, 16')
    p(f'v_add_u32 {tmp}, {t0}, {tmp}')
    for i in range(4): p(f'v_add_u32 {c.dma_voff[i]}, {i * 8 * 2048}, {tmp}')
    for j in range(4):
        p(f'v_bfe_u32 {tmp}, {l}, 1, 1\nv_add_u32 {tmp}, {2 * j}, {tmp}')
        p(f'v_bfe_u32 {tmp2}, {l}, 3, 2\nv_lshlrev_b32 {tmp2}, 1, {tmp2}\nv_xor_b32 {tmp}, {tmp}, {tmp2}')
        p(f'v_lshrrev_b32 {tmp2}, 2, {l}\nv_lshlrev_b32 {tmp2}, 7, {tmp2}\nv_lshl_add_u32 {tmp}, {tmp}, 4, {tmp2}')
        p(f'v_and_b32 {tmp2}, 1, {l}\nv_lshl_add_u32 {trb[j]}, {tmp2}, 3, {tmp}')
        p(f'v_add_u32 {trb[4 + j]}, 0x10000, {trb[j]}')
    c.tr = lambda j, ks, hh, slot: (trb[(slot >> 2) * 4 + j], (slot & 3) * 16384 + (32 * ks + 16 * hh) * 128)
    c.dma_lds = lambda i, slot: slot * 16384 + i * 1024
    c.w_stride = 128 * 2048
    p.wait(lgkm0=True)
    srd(p, rW, pw, wrows * 2048); srd(p, rws, pws, WS_SIZE); srd(p, rx, px, 4 * MB_)
    c.rW, c.rX = rW, rws
    p(f's_lshl_b32 {c.s_wl}, {wv}, 12\ns_lshl_b32 {c.s_wo}, {nt}, 7')
    p(f's_lshl_b32 {mb0}, {mt}, 3\ns_lshl_b32 {t0}, {wv}, 1\ns_add_u32 {mb0}, {mb0}, {t0}')
    p(f's_mul_i32 {c.s_xo}, {mb0}, {nkx * 1024}\ns_add_u32 {c.s_xo}, {c.s_xo}, {x_off}')
    res = V.take(16, 4); gv = V.take(16, 4); vrow = V.take(); vg = V.take()
    so = S.take(); so2 = S.take()
    def pre():
        p(f'v_and_b32 {vrow}, 15, {l}\nv_lshlrev_b32 {vrow}, 11, {vrow}\nv_lshrrev_b32 {tmp}, 4, {l}\nv_lshl_add_u32 {vrow}, {tmp}, 3, {vrow}')
        p(f'v_lshlrev_b32 {vg}, 4, {tmp}')
        if not final:
            p(f's_lshl_b32 {so}, {mb0}, 15\ns_lshl_b32 {t0}, {nt}, 7\ns_add_u32 {so}, {so}, {t0}')
            for i in range(2):
                for j in range(4):
                    p(f'buffer_load_dwordx2 {res[i*8+2*j:i*8+2*j+2]}, {vrow}, {rx}, {so} offen offset:{32 * j}')
                if i == 0: p(f's_add_u32 {so}, {so}, 32768')
        else:
            p(f's_lshl_b32 {so}, {mb0}, 15\ns_lshl_b32 {t0}, {nt}, 11\ns_add_u32 {so}, {so}, {t0}\ns_add_u32 {so}, {so}, {WS_X1}')
            for i in range(2):
                for jj in range(2):
                    p(f'buffer_load_dwordx4 {res[i*8+4*jj:i*8+4*jj+4]}, {l16}, {rws}, {so} offen offset:{1024 * jj}')
                if i == 0: p(f's_add_u32 {so}, {so}, 32768')
        p(f's_lshl_b32 {so2}, {nt}, 8\ns_add_u32 {so2}, {so2}, {WS_MOD + (5 if final else 2) * 4096}')
        for j in range(4): p(f'buffer_load_dwordx4 {gv[4*j:4*j+4]}, {vg}, {rws}, {so2} offen offset:{64 * j}')
        for r in range(32): p(f'v_mov_b32 {accr[r]}, 0')
    gemm_core(p, c, pre_wait_hook=pre)
    p('s_nop 7')
    p.wait(vm_regs=[res, gv])
    if final:
        for r in range(16): p(f'v_mul_f32 {gv[r]}, {hexf(1.0 / LOG2E)}, {gv[r]}')
    u = V.take(2, 2)
    for i in range(2):
        for j in range(4):
            Aq = c.acc(j, i)
            for d in range(2):
                x = res[i * 8 + 2 * j + d]
                p(f'v_lshlrev_b32 {u[0]}, 16, {x}\nv_and_b32 {u[1]}, 0xffff0000, {x}')
                p(f'v_fma_f32 {Aq[2*d]}, {Aq[2*d]}, {gv[4*j+2*d]}, {u[0]}\nv_fma_f32 {Aq[2*d+1]}, {Aq[2*d+1]}, {gv[4*j+2*d+1]}, {u[1]}')
            p(f'v_cvt_pk_bf16_f32 {res[i*8+2*j]}, {Aq[0]}, {Aq[1]}\nv_cvt_pk_bf16_f32 {res[i*8+2*j+1]}, {Aq[2]}, {Aq[3]}')
    if not final:
        p(f's_lshl_b32 {so}, {mb0}, 15\ns_lshl_b32 {t0}, {nt}, 11\ns_add_u32 {so}, {so}, {t0}\ns_add_u32 {so}, {so}, {WS_X1}')
        for i in range(2):
            for jj in range(2):
                p(f'buffer_store_dwordx4 {res[i*8+4*jj:i*8+4*jj+4]}, {l16}, {rws}, {so} offen offset:{1024 * jj}')
            if i == 0: p(f's_add_u32 {so}, {so}, 32768')
    else:
        p(f's_lshl_b32 {so}, {mb0}, 15\ns_lshl_b32 {t0}, {nt}, 7\ns_add_u32 {so}, {so}, {t0}')
        for i in range(2):
            for j in range(4):
                p(f'buffer_store_dwordx2 {res[i*8+2*j:i*8+2*j+2]}, {vrow}, {rx}, {so} offen offset:{32 * j}')
            if i == 0: p(f's_add_u32 {so}, {so}, 32768')
    p('s_waitcnt vmcnt(0)')
    p.label(f'L_{name}_end')
    p('s_endpgm')
    return kernel_text(kname, p.finalize())

def k_oproj(**opt): return k_skinny('op', 'k_oproj_kernel', A_WO, 4096, WS_OF, 128, 8, 16, False)
def k_down(**opt): return k_skinny('dn', 'k_down_kernel', A_WD, 3584, WS_HM, 112, 7, 14, True)

if __name__ == '__main__':
    for f in (k_gateup, k_oproj, k_down):
        t = f(); print(f.__name__, len(t), t.count('\n'))
```

```python
from common import *

def k_prep():
    p = Prog('prep')
    S = Alloc('s', 4, 100); V = Alloc('v', 1, 256)
    pc, pw, pk, pv, pws = [S.take(2) for _ in range(5)]
    rc, rw, rk, rv, rws = [S.take(4) for _ in range(5)]
    p('s_cmp_ge_u32 s2, 320\ns_cbranch_scc1 L_prep_end')
    load_ptr(p, pc, A_C); load_ptr(p, pw, A_WMOD); load_ptr(p, pk, A_K); load_ptr(p, pv, A_V); load_ptr(p, pws, A_WS)
    p.wait(lgkm0=True)
    srd(p, rc, pc, 2048); srd(p, rw, pw, 1024 * 6144 * 2); srd(p, rk, pk, 2 * MB_); srd(p, rv, pv, 2 * MB_); srd(p, rws, pws, WS_SIZE)
    p('s_cmp_ge_u32 s2, 192\ns_cbranch_scc1 L_prep_kv')
    soff = S.take(16)
    voff = V.take(); vt = V.take(4, 4); vc = V.take(2, 2); vs = V.take(16, 4); acc = V.take(8, 4); w = V.take(64, 4); u = V.take(4)
    p(f'v_lshrrev_b32 {vt[0]}, 2, v0')
    p(f'v_and_b32 {vt[1]}, 3, v0')
    p(f's_mov_b32 s3, {16 * 12288}')
    p(f'v_mul_lo_u32 {voff}, {vt[0]}, s3')
    p(f'v_lshl_add_u32 {voff}, {vt[1]}, 4, {voff}')
    p(f's_lshl_b32 s3, s2, 6')
    p(f'v_add_u32 {voff}, s3, {voff}')
    for j in range(16): p(f's_mov_b32 {soff[j]}, {j * 12288}')
    p(f'v_lshlrev_b32 {vt[2]}, 3, v0')
    p(f'buffer_load_dwordx2 {vc}, {vt[2]}, {rc}, 0 offen')
    for j in range(16): p(f'buffer_load_dwordx4 {w[4*j:4*j+4]}, {voff}, {rw}, {soff[j]} offen')
    p.wait(vm_regs=[vc])
    p(f'v_lshlrev_b32 {vs[0]}, 16, {vc[0]}\nv_and_b32 {vs[1]}, 0xffff0000, {vc[0]}\nv_lshlrev_b32 {vs[2]}, 16, {vc[1]}\nv_and_b32 {vs[3]}, 0xffff0000, {vc[1]}')
    for e in range(4): p(f'v_mul_f32 {u[e]}, {hexf(-LOG2E)}, {vs[e]}')
    for e in range(4): p(f'v_exp_f32 {u[e]}, {u[e]}')
    p('s_nop 0')
    for e in range(4): p(f'v_add_f32 {u[e]}, 1.0, {u[e]}')
    for e in range(4): p(f'v_rcp_f32 {u[e]}, {u[e]}')
    p('s_nop 0')
    for e in range(4): p(f'v_mul_f32 {u[e]}, {u[e]}, {vs[e]}')
    p(f'v_cvt_pk_bf16_f32 {vc[0]}, {u[0]}, {u[1]}\nv_cvt_pk_bf16_f32 {vc[1]}, {u[2]}, {u[3]}')
    p(f'v_lshlrev_b32 {vt[0]}, 16, {vc[0]}\nv_and_b32 {vt[1]}, 0xffff0000, {vc[0]}\nv_lshlrev_b32 {vt[2]}, 16, {vc[1]}\nv_and_b32 {vt[3]}, 0xffff0000, {vc[1]}')
    p(f'v_lshlrev_b32 {u[0]}, 4, v0')
    p(f'ds_write_b128 {u[0]}, {vt}')
    p.wait(lgkm0=True)
    p('s_barrier')
    p(f'v_lshrrev_b32 {u[1]}, 2, v0\nv_lshlrev_b32 {u[1]}, 6, {u[1]}')
    for q in range(4): p(f'ds_read_b128 {vs[4*q:4*q+4]}, {u[1]} offset:{16*q}')
    for e in range(8): p(f'v_mov_b32 {acc[e]}, 0')
    p.wait(lgkm0=True)
    for j in range(16):
        p.wait(vm_regs=[w[4*j:4*j+4]])
        for d in range(4):
            p(f'v_lshlrev_b32 {u[2]}, 16, {w[4*j+d]}')
            p(f'v_and_b32 {u[3]}, 0xffff0000, {w[4*j+d]}')
            p(f'v_fmac_f32 {acc[2*d]}, {u[2]}, {vs[j]}')
            p(f'v_fmac_f32 {acc[2*d+1]}, {u[3]}, {vs[j]}')
    p(f'v_lshlrev_b32 {u[0]}, 5, v0')
    p(f'ds_write_b128 {u[0]}, {acc[0:4]} offset:4096')
    p(f'ds_write_b128 {u[0]}, {acc[4:8]} offset:4112')
    p.wait(lgkm0=True)
    p('s_barrier')
    p(f'v_and_b32 {u[0]}, 31, v0\nv_lshrrev_b32 {u[1]}, 5, v0\nv_lshlrev_b32 {u[1]}, 10, {u[1]}\nv_lshl_add_u32 {u[0]}, {u[0]}, 2, {u[1]}')
    for e in range(8): p(f'ds_read_b32 {acc[e]}, {u[0]} offset:{4096 + e * 128}')
    p.wait(lgkm0=True)
    for e in range(1, 8): p(f'v_add_f32 {acc[0]}, {acc[0]}, {acc[e]}')
    p(f'v_lshlrev_b32 {u[1]}, 2, v0')
    p(f'ds_write_b32 {u[1]}, {acc[0]} offset:16384')
    p.wait(lgkm0=True)
    p('s_barrier')
    p(f'v_and_b32 {u[0]}, 31, v0\nv_lshlrev_b32 {u[0]}, 2, {u[0]}')
    for e in range(8): p(f'ds_read_b32 {acc[e]}, {u[0]} offset:{16384 + e * 128}')
    p.wait(lgkm0=True)
    for e in range(1, 8): p(f'v_add_f32 {acc[0]}, {acc[0]}, {acc[e]}')
    p(f'v_cvt_pk_bf16_f32 {acc[0]}, {acc[0]}, {acc[0]}\nv_lshlrev_b32 {acc[0]}, 16, {acc[0]}')
    p(f's_lshl_b32 s3, s2, 7')
    p(f'v_add_u32 {u[0]}, s3, {u[0]}')
    p(f'v_cmp_gt_u32 vcc, 32, v0')
    p('s_nop 1')
    p('s_and_saveexec_b64 s[96:97], vcc')
    p('s_cbranch_execz L_prep_end')
    p(f'buffer_store_dword {acc[0]}, {u[0]}, {rws}, 0 offen')
    p('s_waitcnt vmcnt(0)')
    p('s_endpgm')
    p.fence()
    p.label('L_prep_kv')
    V = Alloc('v', 1, 256)
    wv = S.take(); h = S.take(); t = S.take(); so = S.take(); so2 = S.take()
    l = V.take(); vo = V.take(); vo2 = V.take(); l16 = V.take(); d = V.take(16, 4); a = V.take(); tmp = V.take()
    p(f'v_lshrrev_b32 {tmp}, 6, v0\nv_and_b32 {l}, 63, v0')
    p(f'v_readfirstlane_b32 {wv}, {tmp}')
    p(f's_sub_u32 {so}, s2, 192\ns_lshr_b32 {h}, {so}, 5\ns_and_b32 {t}, {so}, 31')
    p(f'v_lshlrev_b32 {l16}, 4, {l}')
    p(f's_lshl_b32 {so}, {h}, 19\ns_lshl_b32 {so2}, {t}, 14\ns_add_u32 {so}, {so}, {so2}')
    p(f's_lshl_b32 {so2}, {wv}, 12\ns_mov_b32 m0, {so2}\ns_add_u32 {so2}, {so2}, {so}')
    for i in range(4): p(f'buffer_load_dwordx4 {l16}, {rv}, {so2} offen offset:{i * 1024} lds', tag=('vdma', 0, 0))
    p(f'v_and_b32 {vo}, 15, {l}\nv_lshlrev_b32 {vo}, 8, {vo}\nv_lshrrev_b32 {tmp}, 4, {l}\nv_lshl_add_u32 {vo}, {tmp}, 3, {vo}')
    p(f's_lshl_b32 {so2}, {wv}, 12\ns_add_u32 {so2}, {so2}, {so}')
    for s in range(4):
        p(f'buffer_load_dwordx2 {d[4*s:4*s+2]}, {vo}, {rk}, {so2} offen offset:{64 * s}')
        p(f'buffer_load_dwordx2 {d[4*s+2:4*s+4]}, {vo}, {rk}, {so2} offen offset:{64 * s + 32}')
    p(f's_add_u32 {so2}, {so2}, {WS_KF}')
    for s in range(4):
        p.wait(vm_regs=[d[4*s:4*s+4]])
        p(f'buffer_store_dwordx4 {d[4*s:4*s+4]}, {l16}, {rws}, {so2} offen offset:{1024 * s}')
    p.wait(vm_tags=[('vdma', 0, 0)])
    p('s_barrier')
    p(f'v_lshrrev_b32 {a}, 2, {l}\nv_lshlrev_b32 {a}, 8, {a}\nv_and_b32 {tmp}, 3, {l}\nv_lshl_add_u32 {a}, {tmp}, 3, {a}')
    p(f's_lshr_b32 {so2}, {wv}, 1\ns_lshl_b32 {so2}, {so2}, 13')
    p(f's_and_b32 s3, {wv}, 1\ns_lshl_b32 s3, s3, 7\ns_add_u32 {so2}, {so2}, s3')
    p(f'v_add_u32 {a}, {so2}, {a}')
    d2 = V.take(16, 4)
    for jj in range(4):
        p(f'ds_read_b64_tr_b16 {d2[4*jj:4*jj+2]}, {a} offset:{32 * jj}')
        p(f'ds_read_b64_tr_b16 {d2[4*jj+2:4*jj+4]}, {a} offset:{32 * jj + 4096}')
    p(f's_lshl_b32 {so2}, {wv}, 12\ns_add_u32 {so2}, {so2}, {so}\ns_add_u32 {so2}, {so2}, {WS_VF}')
    for jj in range(4):
        p.wait(lgkm_regs=[d2[4*jj:4*jj+4]])
        p(f'buffer_store_dwordx4 {d2[4*jj:4*jj+4]}, {l16}, {rws}, {so2} offen offset:{1024 * jj}')
    p('s_waitcnt vmcnt(0)')
    p.label('L_prep_end')
    p('s_endpgm')
    return kernel_text('k0_prep_kernel', p.finalize(), nvgpr=128, accum=128)

def k_ln(which):
    name = f'ln{which}'
    p = Prog(name)
    S = Alloc('s', 4, 100); V = Alloc('v', 1, 160)
    px, pws = S.take(2), S.take(2)
    rx, rws = S.take(4), S.take(4)
    wv, so, so2 = S.take(), S.take(), S.take()
    cs = (LOG2E / 128 ** 0.5) if which == 1 else LOG2E
    off_s = (0 if which == 1 else 3) * 4096
    off_c = (1 if which == 1 else 4) * 4096
    dst = WS_H1 if which == 1 else WS_H2
    p(f's_cmp_ge_u32 s2, 128\ns_cbranch_scc1 L_{name}_end')
    load_ptr(p, px, A_X); load_ptr(p, pws, A_WS)
    l = V.take(); l16 = V.take(); tmp = V.take(); tmp2 = V.take(); vo = V.take(); vm = V.take()
    xp = V.take(16, 4); x = V.take(32, 4); ms = V.take(32, 4); red = V.take(8, 4); sm = V.take(); mu = V.take(); rs = V.take()
    p(f'v_lshrrev_b32 {tmp}, 6, v0\nv_and_b32 {l}, 63, v0')
    p(f'v_lshlrev_b32 {l16}, 4, {l}')
    p(f'v_readfirstlane_b32 {wv}, {tmp}')
    p.wait(lgkm0=True)
    srd(p, rx, px, 4 * MB_); srd(p, rws, pws, WS_SIZE)
    if which == 1:
        p(f'v_and_b32 {vo}, 15, {l}\nv_lshlrev_b32 {vo}, 11, {vo}\nv_lshrrev_b32 {tmp}, 4, {l}\nv_lshl_add_u32 {vo}, {tmp}, 3, {vo}')
        p(f's_lshl_b32 {so}, s2, 15\ns_lshl_b32 {so2}, {wv}, 8\ns_add_u32 {so}, {so}, {so2}')
        for i in range(4):
            p(f'buffer_load_dwordx2 {xp[4*i:4*i+2]}, {vo}, {rx}, {so} offen offset:{64 * i}')
            p(f'buffer_load_dwordx2 {xp[4*i+2:4*i+4]}, {vo}, {rx}, {so} offen offset:{64 * i + 32}')
    else:
        p(f's_lshl_b32 {so}, s2, 15\ns_lshl_b32 {so2}, {wv}, 12\ns_add_u32 {so}, {so}, {so2}\ns_add_u32 {so}, {so}, {WS_X1}')
        for i in range(4):
            p(f'buffer_load_dwordx4 {xp[4*i:4*i+4]}, {l16}, {rws}, {so} offen offset:{1024 * i}')
    p(f'v_lshrrev_b32 {vm}, 4, {l}\nv_lshlrev_b32 {vm}, 4, {vm}')
    p(f's_lshl_b32 {so2}, {wv}, 9')
    A = ms; B = V.take(32, 4)
    s_c = S.take(); s_s = S.take()
    p(f's_add_u32 {s_c}, {so2}, {WS_MOD + off_c}\ns_add_u32 {s_s}, {so2}, {WS_MOD + off_s}')
    for i in range(4):
        for hh in range(2):
            p(f'buffer_load_dwordx4 {A[8*i+4*hh:8*i+4*hh+4]}, {vm}, {rws}, {s_c} offen offset:{128 * i + 64 * hh}')
            p(f'buffer_load_dwordx4 {B[8*i+4*hh:8*i+4*hh+4]}, {vm}, {rws}, {s_s} offen offset:{128 * i + 64 * hh}')
    p.wait(vm_regs=[xp])
    for d in range(16):
        p(f'v_lshlrev_b32 {x[2*d]}, 16, {xp[d]}\nv_and_b32 {x[2*d+1]}, 0xffff0000, {xp[d]}')
    p(f'v_add_f32 {sm}, {x[0]}, {x[1]}')
    for e in range(2, 32): p(f'v_add_f32 {sm}, {sm}, {x[e]}')
    xsum_g(p, sm, tmp)
    p(f'v_and_b32 {tmp2}, 15, {l}\nv_lshlrev_b32 {tmp2}, 5, {tmp2}')
    p(f's_lshl_b32 {so2}, {wv}, 2')
    p(f'v_add_u32 {tmp}, {so2}, {tmp2}')
    p(f'ds_write_b32 {tmp}, {sm}')
    p.wait(lgkm0=True)
    p('s_barrier')
    p(f'ds_read_b128 {red[0:4]}, {tmp2}\nds_read_b128 {red[4:8]}, {tmp2} offset:16')
    p.wait(lgkm0=True)
    for e in range(1, 8): p(f'v_add_f32 {red[0]}, {red[0]}, {red[e]}')
    p(f'v_mul_f32 {mu}, {hexf(1.0 / 1024)}, {red[0]}')
    for e in range(32): p(f'v_sub_f32 {x[e]}, {x[e]}, {mu}')
    p(f'v_mul_f32 {sm}, {x[0]}, {x[0]}')
    for e in range(1, 32): p(f'v_fmac_f32 {sm}, {x[e]}, {x[e]}')
    xsum_g(p, sm, tmp)
    p(f'v_add_u32 {tmp}, {so2}, {tmp2}')
    p(f'ds_write_b32 {tmp}, {sm} offset:1024')
    p.wait(lgkm0=True)
    p('s_barrier')
    p(f'ds_read_b128 {red[0:4]}, {tmp2} offset:1024\nds_read_b128 {red[4:8]}, {tmp2} offset:1040')
    p.wait(lgkm0=True)
    for e in range(1, 8): p(f'v_add_f32 {red[0]}, {red[0]}, {red[e]}')
    p(f'v_mov_b32 {tmp}, {hexf(1e-5)}')
    p(f'v_fmac_f32 {tmp}, {hexf(1.0 / 1024)}, {red[0]}')
    p(f'v_rsq_f32 {rs}, {tmp}')
    p('s_nop 0')
    p(f'v_mul_f32 {rs}, {hexf(cs)}, {rs}')
    p.wait(vm_regs=[A, B])
    for e in range(0, 32, 2):
        p(f'v_add_f32 {A[e]}, 1.0, {A[e]}\nv_add_f32 {A[e+1]}, 1.0, {A[e+1]}')
        p(f'v_cvt_pk_bf16_f32 {tmp}, {A[e]}, {A[e+1]}')
        p(f'v_lshlrev_b32 {A[e]}, 16, {tmp}\nv_and_b32 {A[e+1]}, 0xffff0000, {tmp}')
    for e in range(32):
        p(f'v_mul_f32 {x[e]}, {x[e]}, {rs}')
        p(f'v_mul_f32 {B[e]}, {hexf(cs)}, {B[e]}')
        p(f'v_fmac_f32 {B[e]}, {x[e]}, {A[e]}')
    for d in range(16): p(f'v_cvt_pk_bf16_f32 {xp[d]}, {B[2*d]}, {B[2*d+1]}')
    p(f's_lshl_b32 {so}, s2, 15\ns_lshl_b32 {so2}, {wv}, 12\ns_add_u32 {so}, {so}, {so2}\ns_add_u32 {so}, {so}, {dst}')
    for i in range(4):
        p(f'buffer_store_dwordx4 {xp[4*i:4*i+4]}, {l16}, {rws}, {so} offen offset:{1024 * i}')
    p('s_waitcnt vmcnt(0)')
    p.label(f'L_{name}_end')
    p('s_endpgm')
    return kernel_text(f'k_{name}_kernel', p.finalize(), nvgpr=160, accum=160)

if __name__ == '__main__':
    print(len(k_prep()), len(k_ln(1)), len(k_ln(2)))
```

```python
import sys, importlib
sys.path.insert(0, 'gen')
from common import *
HEADER = open('adaLN_cond__gqa_block_cached__glu_gated_glu__prompt.s.ref').read().split('; Override launch')[0]
def assemble(kernels, path):
    s = HEADER
    for (n, g, b, lds, t) in kernels:
        s += f'; @launch kernel={n} grid=({g},1,1) block=({b},1,1) lds={lds}\n'
    s += '.amdgcn_target "amdgcn-amd-amdhsa--gfx950"\n'
    done = set()
    for (n, g, b, lds, t) in kernels:
        if n not in done:
            s += t; done.add(n)
    open(path, 'w').write(s)
    print(path, len(s), 'bytes')
def all_kernels(upto=99, **opt):
    import k_small
    ks = [('k0_prep_kernel', 320, 256, 20480, k_small.k_prep()),
          ('k_ln1_kernel', 128, 512, 2048, k_small.k_ln(1))]
    try:
        import k_attn
        ks.append(('k_attn_kernel', 256, 256, 163840, k_attn.k_attn(**opt)))
        import k_gemm
        ks.append(('k_oproj_kernel', 256, 256, k_gemm.LDS_OPROJ, k_gemm.k_oproj(**opt)))
        ks.append(('k_ln2_kernel', 128, 512, 2048, k_small.k_ln(2)))
        ks.append(('k_gateup_kernel', 256, 256, k_gemm.LDS_GU, k_gemm.k_gateup(**opt)))
        ks.append(('k_down_kernel', 256, 256, k_gemm.LDS_DOWN, k_gemm.k_down(**opt)))
    except ImportError as e:
        print('partial build:', e)
    return ks[:upto]
if __name__ == '__main__':
    out = sys.argv[1] if len(sys.argv) > 1 else 'cur.s'
    assemble(all_kernels(), out)
```
